```python
import torch

def _softmax(x, axis=-1):
    return torch.softmax(x, dim=axis)
def _gelu(x):
    return torch.nn.functional.gelu(x, approximate="tanh")
def _silu(x):
    return torch.nn.functional.silu(x)
def _sigmoid(x):
    return torch.sigmoid(x)
def _layernorm(x, axis=-1, eps=1e-5):
    m = x.mean(dim=axis, keepdim=True)
    v = x.var(dim=axis, keepdim=True, unbiased=False)
    return (x - m) / torch.sqrt(v + eps)
def _scatter_add(tgt, idx, src, axis=0):
    return tgt.clone().index_add_(axis, idx, src)
def _segment_sum(src, seg, n):
    out = torch.zeros((n,) + src.shape[1:], dtype=src.dtype)
    return out.index_add_(0, seg, src)
def _pad(x, pw):
    flat = tuple(v for pair in reversed(pw) for v in pair)
    return torch.nn.functional.pad(x, flat)

kernel_name = 'concat_heads__ssm_conv_s5__linear_attn_block__prompt'

def setup_inputs():

    _w = (lambda a: (lambda t: t.to(torch.bfloat16) if t.is_floating_point() else t)(torch.as_tensor(a)))
    def _A_setup():
        B, S, D = 1, 2048, 512
        P = D
        Lambda_re = -0.5 * (lambda _x: torch.exp(torch.as_tensor(_x)))((lambda *s: torch.randn(*s, dtype=torch.bfloat16) * 0.2)(P))
        Lambda_im = (lambda *s: torch.randn(*s, dtype=torch.bfloat16) * 0.8)(P) * 1.0
        B_re = (lambda *s: torch.randn(*s, dtype=torch.bfloat16) * 0.2)(P, D) * (D ** -0.5)
        B_im = (lambda *s: torch.randn(*s, dtype=torch.bfloat16) * 0.2)(P, D) * (D ** -0.5)
        C_re = (lambda *s: torch.randn(*s, dtype=torch.bfloat16) * 0.2)(D, P) * (P ** -0.5)
        C_im = (lambda *s: torch.randn(*s, dtype=torch.bfloat16) * 0.2)(D, P) * (P ** -0.5)
        log_dt = (lambda *s: torch.randn(*s, dtype=torch.bfloat16) * 0.2)(P) * 0.3 - 2.0
        Dskip = (lambda *s: torch.randn(*s, dtype=torch.bfloat16) * 0.05)(D)
        return {
            "x": _w((lambda *s: torch.randn(*s, dtype=torch.bfloat16) * 0.05)(B, S, D)),
            "Lambda_re": _w(Lambda_re),
            "Lambda_im": _w(Lambda_im),
            "B_re": _w(B_re),
            "B_im": _w(B_im),
            "C_re": _w(C_re),
            "C_im": _w(C_im),
            "log_dt": _w(log_dt),
            "Dskip": _w(Dskip),
        }
    _A_in = _A_setup()

    def _B_setup():
        B, S, D = 1, 2048, 512
        return {
            "x": _w((lambda *s: torch.randn(*s, dtype=torch.bfloat16) * 0.05)(B, S, D)),
            "wqkv": _w((lambda *s: torch.randn(*s, dtype=torch.bfloat16) * 0.4)(D, 3 * D)),
            "wo": _w((lambda *s: torch.randn(*s, dtype=torch.bfloat16) * 0.05)(D, D)),
        }
    _B_in = _B_setup()

    return {
        "A_x": _A_in["x"],
        "A_Lambda_re": _A_in["Lambda_re"],
        "A_Lambda_im": _A_in["Lambda_im"],
        "A_B_re": _A_in["B_re"],
        "A_B_im": _A_in["B_im"],
        "A_C_re": _A_in["C_re"],
        "A_C_im": _A_in["C_im"],
        "A_log_dt": _A_in["log_dt"],
        "A_Dskip": _A_in["Dskip"],
        "B_x": _B_in["x"],
        "B_wqkv": _B_in["wqkv"],
        "B_wo": _B_in["wo"],
    }

def reference(A_x, A_Lambda_re, A_Lambda_im, A_B_re, A_B_im, A_C_re, A_C_im, A_log_dt, A_Dskip, B_x, B_wqkv, B_wo):
    def _A_ref(x, Lambda_re, Lambda_im, B_re, B_im, C_re, C_im, log_dt, Dskip):
        Bsz, L, H = x.shape
        Lam = Lambda_re + 1j * Lambda_im
        Bmat = B_re + 1j * B_im
        Cmat = C_re + 1j * C_im
        dt = torch.exp(log_dt)
        Lam_bar = torch.exp(dt * Lam)
        B_bar = ((Lam_bar - 1.0) / Lam)[:, None] * Bmat
        Bu = torch.einsum("bld,pd->blp", x + 0j, B_bar)
        h = torch.zeros_like(Bu[:, 0, :])
        hs = []
        for t in range(L):
            h = Lam_bar[None, :] * h + Bu[:, t, :]
            hs.append(h)
        hseq = torch.stack(hs, 1)
        y = 2.0 * torch.einsum("blp,dp->bld", hseq, Cmat).real + x * Dskip[None, None, :]
        return y

    def _B_ref(x, wqkv, wo):
        B, S, D = x.shape
        H = 32; Dh = D // H
        qkv = (lambda x, *d: x.permute(*d))((x @ wqkv).reshape(B, S, 3, H, Dh), 2, 0, 3, 1, 4)
        q, k, v = qkv[0], qkv[1], qkv[2]
        phi = lambda t: torch.where(t > 0, t + 1, torch.exp(t)) + 1e-6
        pq, pk = phi(q), phi(k)
        kv = torch.einsum("bhsd,bhse->bhde", pk, v)
        z = torch.einsum("bhsd->bhd", pk)
        num = torch.einsum("bhqd,bhde->bhqe", pq, kv)
        den = torch.einsum("bhqd,bhd->bhq", pq, z)[..., None] + 1e-6
        o = num / den
        return (lambda x, *d: x.permute(*d))(o, 0, 2, 1, 3).reshape(B, S, D) @ wo

    a = _A_ref(A_x, A_Lambda_re, A_Lambda_im, A_B_re, A_B_im, A_C_re, A_C_im, A_log_dt, A_Dskip)
    b = _B_ref(B_x, B_wqkv, B_wo)
    return torch.concatenate([a, b], axis=-1)
```

```python
import re
TRANS = ("v_exp_f32","v_log_f32","v_rcp_f32","v_rsq_f32","v_sqrt_f32","v_sin_f32","v_cos_f32")
def regs_of(tok, pre):
    tok = tok.strip()
    tok = tok.lstrip('-')
    m = re.fullmatch(r'abs\((.*)\)|\|(.*)\|', tok)
    if m: tok = m.group(1) or m.group(2)
    m = re.fullmatch(pre + r'(\d+)', tok)
    if m: return {int(m.group(1))}
    m = re.fullmatch(pre + r'\[(\d+):(\d+)\]', tok)
    if m: return set(range(int(m.group(1)), int(m.group(2)) + 1))
    return set()

class Asm:
    def __init__(self):
        self.out = []
        self.pos = 0
        self.vw = {}
        self.sw = {}
        self.m0w = -100
        self.stdata = {}
        self.mfmac = {}
        self.vm = []
        self.execw = -100
    def raw(self, s):
        self.out.append(s)
    def comment(self, s):
        self.out.append("    ; " + s)
    def label(self, l):
        self.out.append(l + ":")
    def fence(self):
        self.nop(16)
    def nop(self, n):
        while n > 0:
            k = min(n, 16)
            self.out.append("    s_nop %d" % (k - 1))
            self.pos += k
            n -= k
    def __call__(self, s, vmtag=None):
        s = s.strip()
        mn, _, rest = s.partition(' ')
        ops = [o.strip() for o in rest.split(',')] if rest else []
        clean = []
        for o in ops:
            clean.append(o.split(' ')[0])
        mods = rest
        need = 0
        def req(p, d):
            nonlocal need
            gap = self.pos - p - 1
            if gap < d: need = max(need, d - gap)
        is_mfma = mn.startswith('v_mfma')
        is_valu = mn.startswith('v_') and not is_mfma
        is_trans = mn in TRANS
        is_mem = mn.startswith(('ds_', 'buffer_', 'global_'))
        vr, vwr, sr, swr = set(), set(), set(), set()
        if is_valu or is_mfma:
            d = clean[0]
            if mn.startswith('v_cmp') :
                if d == 'vcc': swr.add('vcc')
                else: swr |= regs_of(d, 's')
            elif mn in ('v_readfirstlane_b32', 'v_readlane_b32'):
                swr |= regs_of(d, 's')
            else:
                vwr |= regs_of(d, 'v')
            srcs = clean[1:]
            if mn in ('v_fmac_f32', 'v_permlane32_swap_b32'): vr |= regs_of(d, 'v')
            if mn == 'v_permlane32_swap_b32': vwr |= regs_of(clean[1], 'v')
            for o in srcs:
                vr |= regs_of(o, 'v'); sr |= regs_of(o, 's')
                if o == 'vcc': sr.add('vcc')
            if mn == 'v_cndmask_b32' and len(clean) == 3: sr.add('vcc')
        elif is_mem:
            is_load = ('load' in mn or mn.startswith('ds_read')) and ' lds' not in (' ' + mods + ' ').replace(',', ' ')
            if is_load:
                vwr |= regs_of(clean[0], 'v'); rest_ops = clean[1:]
            else:
                rest_ops = clean
            for o in rest_ops:
                vr |= regs_of(o, 'v'); sr |= regs_of(o, 's')
        for r in vr:
            if r in self.vw:
                p, k = self.vw[r]
                if k == 'mfma':
                    if is_mfma:
                        cset = regs_of(clean[3], 'v') if len(clean) > 3 else set()
                        if r in cset and r not in (regs_of(clean[1], 'v') | regs_of(clean[2], 'v')):
                            pass
                        else: req(p, 12)
                    else: req(p, 12)
                elif k == 'trans':
                    if not is_trans: req(p, 1)
                    if is_mfma: req(p, 2)
                    if mn in ('v_readfirstlane_b32', 'v_readlane_b32'): req(p, 1)
                    if mn.startswith('v_permlane'): req(p, 2)
                elif k == 'valu':
                    if is_mfma: req(p, 2)
                    if mn in ('v_readfirstlane_b32', 'v_readlane_b32'): req(p, 1)
                    if mn.startswith('v_permlane'): req(p, 2)
        for r in vwr:
            if r in self.vw:
                p, k = self.vw[r]
                if k == 'mfma' and not is_mfma: req(p, 12)
            if r in self.stdata and (is_valu or is_mfma): req(self.stdata[r], 2)
            elif r in self.stdata: req(self.stdata[r], 1)
            if is_valu and r in self.mfmac: req(self.mfmac[r], 7)
        for r in sr:
            if r in self.sw:
                if is_mem: req(self.sw[r], 5)
                else: req(self.sw[r], 2)
        if is_mem and ' lds' in (' ' + mods): req(self.m0w, 1)
        if mn.startswith('s_') and not mn.startswith(('s_nop','s_waitcnt','s_barrier')):
            for o in clean:
                for r in regs_of(o, 's'):
                    if r in self.sw: req(self.sw[r], 3)
            if 'vcc' in mn and 'vcc' in self.sw: req(self.sw['vcc'], 3)
        if need: self.nop(need)
        self.out.append("    " + s)
        kind = 'mfma' if is_mfma else 'trans' if is_trans else 'valu' if is_valu else 'mem'
        for r in vwr: self.vw[r] = (self.pos, kind)
        for r in swr: self.sw[r] = self.pos
        if is_mfma and len(clean) > 3:
            for r in regs_of(clean[3], 'v'): self.mfmac[r] = self.pos
        if is_mem and 'store' in mn and ('x4' in mn or 'x3' in mn):
            data = clean[0] if mn.startswith('buffer_') else clean[1]
            for r in regs_of(data, 'v'): self.stdata[r] = self.pos
        if mn.startswith('s_') and clean and clean[0] == 'm0': self.m0w = self.pos
        if mn.startswith(('buffer_', 'global_')):
            self.vm.append(vmtag)
        self.pos += 1
    def wait_vm_tag(self, tag, extra=""):
        idx = max(i for i, t in enumerate(self.vm) if t == tag)
        n = sum(1 for x in self.vm[idx+1:] if x != 'opt')
        n = min(n, 63)
        self("s_waitcnt vmcnt(%d)%s" % (n, extra))
    def text(self):
        return "\n".join(self.out) + "\n"

class Alloc:
    def __init__(self, start=0): self.n = start; self.hi = start
    def __call__(self, cnt=1, align=1):
        self.n = (self.n + align - 1) // align * align
        r = self.n; self.n += cnt; self.hi = max(self.hi, self.n)
        return r
```

```python
import sys
from asmlib import Asm, Alloc

NAME = "concat_heads__ssm_conv_s5__linear_attn_block__prompt"
WS_H  = 0
WS_O  = 4 << 20
WS_EG = 6 << 20
WS_KG = 7 << 20
LOG2E = 0x3fb8aa3b
EPS6  = 0x358637bd
INV2PI= 0x3e22f983
SPIN  = 200000

def vr(b, n): return "v[%d:%d]" % (b, b + n - 1)
def sr(b, n): return "s[%d:%d]" % (b, b + n - 1)

def load_ptrs(a):
    a("s_load_dwordx16 s[36:51], s[0:1], 0")
    a("s_load_dwordx8 s[52:59], s[0:1], 64")
    a("s_load_dwordx4 s[60:63], s[0:1], 96")
    a("s_load_dwordx2 s[64:65], s[0:1], 112")
P_AX, P_LRE, P_LIM, P_BRE, P_BIM, P_CRE, P_CIM, P_LDT = 36, 38, 40, 42, 44, 46, 48, 50
P_DSK, P_BX, P_WQKV, P_WO, P_OUT, P_DBG, P_WS = 52, 54, 56, 58, 60, 62, 64

def mk_srd(a, d, p, nbytes):
    a("s_mov_b32 s%d, s%d" % (d, p))
    a("s_and_b32 s%d, s%d, 0xffff" % (d + 1, p + 1))
    a("s_mov_b32 s%d, 0x%x" % (d + 2, nbytes))
    a("s_mov_b32 s%d, 0x00020000" % (d + 3))

def cmul(a, zr, zi, ar, ai, br, bi):
    a("v_mul_f32 v%d, v%d, v%d" % (zr, ar, br))
    a("v_mul_f32 v%d, v%d, v%d" % (zi, ar, bi))
    a("v_fma_f32 v%d, -v%d, v%d, v%d" % (zr, ai, bi, zr))
    a("v_fma_f32 v%d, v%d, v%d, v%d" % (zi, ai, br, zi))

def cfma(a, zr, zi, ar, ai, br, bi, cr, ci):
    a("v_fma_f32 v%d, v%d, v%d, v%d" % (zr, ar, br, cr))
    a("v_fma_f32 v%d, v%d, v%d, v%d" % (zi, ar, bi, ci))
    a("v_fma_f32 v%d, -v%d, v%d, v%d" % (zr, ai, bi, zr))
    a("v_fma_f32 v%d, v%d, v%d, v%d" % (zi, ai, br, zi))

def emit_iter(a, stage, reads, mfmas, dmas, first_k):
    a.wait_vm_tag(('st', stage))
    a("s_barrier")
    R = len(reads(0, 0))
    for s in reads(0, 0): a(s)
    for s in reads(1, 1): a(s)
    dq = list(dmas)
    for _ in range(2):
        if dq:
            for s, t in dq.pop(0): a(s, t)
    for j in range(4):
        a("s_waitcnt lgkmcnt(%d)" % (R if j < 3 else 0))
        ml = mfmas(j, j & 1, first_k and j == 0)
        for mi, s in enumerate(ml):
            a(s)
            if dq:
                for s2, t in dq.pop(0): a(s2, t)
        if j + 2 <= 3:
            for s in reads(j + 2, j & 1): a(s)
    while dq:
        for s2, t in dq.pop(0): a(s2, t)

SLOT1 = 28672
L_PQ   = 114688
L_RED  = 122880
L_REDZ = 131072
L_KVT  = 132096
L_SEGE = 134144
LDS1   = 142336

def gen_k1(a):
    K = "k1"
    a.raw(".globl %s_k1_kernel\n.p2align 8\n.type %s_k1_kernel,@function\n%s_k1_kernel:" % (NAME, NAME, NAME))
    a("s_cmp_ge_u32 s2, 256")
    a("s_cbranch_scc1 K1_END")
    load_ptrs(a)
    sW, sR, sCB = 3, 4, 5
    SX_A, SX_B, S_BRE, S_BIM, S_WQ, S_WS, S_DBG = 8, 12, 16, 20, 24, 28, 32
    sT0, sT1, sT2, sCnt, sW1024, sW3072, sOff = 66, 67, 68, 69, 70, 71, 72
    sM0, sM1 = 74, 76
    sLt16 = 78
    sSave = 80
    sRT = 82
    V = Alloc(1)
    vLane, vL31, vHf, vL15, vG4 = V(), V(), V(), V(), V()
    vT = [V() for _ in range(8)]
    vXoff, vWAoff = V(), V()
    vWB = [V() for _ in range(3)]
    vXf = [[V() for _ in range(4)] for _ in range(2)]
    vWAf = [[V() for _ in range(4)] for _ in range(2)]
    vWBf = [V(), V()]
    vZero = V()
    vTag = V(2, 2)
    l1, l2, l3, l4 = [(V(), V()) for _ in range(4)]
    l128 = (V(), V()); coef = (V(), V())
    Q = [(V(), V()) for _ in range(4)]
    cg = [(V(), V()) for _ in range(4)]
    big2 = V(32, 4)
    frag = [big2, big2 + 16]
    accB = [V(16, 4) for _ in range(3)]
    accA = [V(16, 4) for _ in range(2)]
    big = V(64, 4)
    print("K1 vgprs", V.hi, file=sys.stderr)
    assert V.hi <= 256

    a("v_and_b32 v%d, 63, v0" % vLane)
    a("v_lshrrev_b32 v%d, 6, v0" % vT[0])
    a("v_readfirstlane_b32 s%d, v%d" % (sW, vT[0]))
    a("s_and_b32 s%d, s2, 7" % sT0)
    a("s_lshr_b32 s%d, s2, 3" % sT1)
    a("s_lshr_b32 s%d, s%d, 1" % (sR, sT0))
    a("s_lshl_b32 s%d, s%d, 2" % (sR, sR))
    a("s_lshr_b32 s%d, s%d, 3" % (sT2, sT1))
    a("s_add_u32 s%d, s%d, s%d" % (sR, sR, sT2))
    a("s_and_b32 s%d, s%d, 1" % (sCB, sT0))
    a("s_lshl_b32 s%d, s%d, 3" % (sCB, sCB))
    a("s_and_b32 s%d, s%d, 7" % (sT2, sT1))
    a("s_add_u32 s%d, s%d, s%d" % (sCB, sCB, sT2))
    a("s_lshl_b32 s%d, s%d, 10" % (sW1024, sW))
    a("s_mul_i32 s%d, s%d, 3072" % (sW3072, sW))
    a("s_mov_b32 s%d, -1" % sM0); a("s_mov_b32 s%d, 0" % (sM0 + 1))
    a("s_mov_b32 s%d, 0" % sM1); a("s_mov_b32 s%d, -1" % (sM1 + 1))
    a("s_mov_b32 s%d, 0x0000ffff" % sLt16); a("s_mov_b32 s%d, 0x0000ffff" % (sLt16 + 1))
    a("v_and_b32 v%d, 31, v0" % vL31)
    a("v_lshrrev_b32 v%d, 5, v%d" % (vHf, vLane))
    a("v_and_b32 v%d, 15, v0" % vL15)
    a("v_lshrrev_b32 v%d, 4, v%d" % (vG4, vLane))
    a("v_mov_b32 v%d, 0" % vZero)
    t0, t1, t2, t3, t4 = vT[:5]
    a("s_lshl_b32 s%d, s%d, 2" % (sT0, sW))
    a("v_add_u32 v%d, s%d, v%d" % (t0, sT0, vG4))
    a("v_xor_b32 v%d, v%d, v%d" % (t1, vL15, t0))
    a("v_lshrrev_b32 v%d, 3, v%d" % (t2, t1))
    a("v_and_b32 v%d, 7, v%d" % (t1, t1))
    a("v_lshlrev_b32 v%d, 1, v%d" % (t0, t0))
    a("v_add_u32 v%d, v%d, v%d" % (t0, t0, t2))
    a("v_lshlrev_b32 v%d, 10, v%d" % (t0, t0))
    a("v_lshl_add_u32 v%d, v%d, 4, v%d" % (t0, t1, t0))
    a("s_lshl_b32 s%d, s%d, 17" % (sT0, sR))
    a("v_add_u32 v%d, s%d, v%d" % (vXoff, sT0, t0))
    a("s_lshl_b32 s%d, s%d, 15" % (sT0, sCB))
    a("v_add_u32 v%d, s%d, v%d" % (vWAoff, sT0, t0))
    a("s_mov_b32 s%d, 43691" % sT1)
    a("s_mul_i32 s%d, s%d, 192" % (sT0, sW))
    a("s_lshl_b32 s%d, s%d, 6" % (sT2, sCB))
    for jj in range(3):
        a("v_add_u32 v%d, s%d, v%d" % (t0, sT0, vLane))
        if jj: a("v_add_u32 v%d, %d, v%d" % (t0, 64 * jj, t0))
        a("v_mul_lo_u32 v%d, v%d, s%d" % (t1, t0, sT1))
        a("v_lshrrev_b32 v%d, 19, v%d" % (t1, t1))
        a("v_mul_u32_u24 v%d, 12, v%d" % (t2, t1))
        a("v_sub_u32 v%d, v%d, v%d" % (t2, t0, t2))
        a("v_mul_u32_u24 v%d, 0xc00, v%d" % (t1, t1))
        a("v_lshrrev_b32 v%d, 2, v%d" % (t3, t2))
        a("v_lshl_add_u32 v%d, v%d, 10, v%d" % (t1, t3, t1))
        a("v_and_b32 v%d, 3, v%d" % (t2, t2))
        a("v_lshl_add_u32 v%d, v%d, 4, v%d" % (t1, t2, t1))
        a("v_add_u32 v%d, s%d, v%d" % (vWB[jj], sT2, t1))
    a("v_lshrrev_b32 v%d, 1, v%d" % (t0, vL31))
    a("v_and_b32 v%d, 1, v%d" % (t1, vL31))
    a("v_lshl_add_u32 v%d, v%d, 3, v%d" % (t1, t1, vHf))
    a("v_xor_b32 v%d, v%d, v%d" % (t1, t1, t0))
    a("v_lshlrev_b32 v%d, 4, v%d" % (t1, t1))
    a("v_lshl_add_u32 v%d, v%d, 8, v%d" % (t1, t0, t1))
    a("s_lshl_b32 s%d, s%d, 12" % (sT0, sW))
    for j in range(4):
        a("v_xor_b32 v%d, %d, v%d" % (t2, 32 * j, t1))
        a("v_add_u32 v%d, s%d, v%d" % (vXf[0][j], sT0, t2))
        a("v_add_u32 v%d, 0x%x, v%d" % (vXf[1][j], 2 * SLOT1, vXf[0][j]))
        a("v_add_u32 v%d, 0x4000, v%d" % (vWAf[0][j], t2))
        a("v_add_u32 v%d, 0x%x, v%d" % (vWAf[1][j], 2 * SLOT1, vWAf[0][j]))
    a("v_lshrrev_b32 v%d, 2, v%d" % (t0, vL15))
    a("v_lshl_add_u32 v%d, v%d, 3, v%d" % (t0, vHf, t0))
    a("v_mul_u32_u24 v%d, 192, v%d" % (t0, t0))
    a("v_and_b32 v%d, 1, v%d" % (t1, vG4))
    a("v_lshl_add_u32 v%d, v%d, 5, v%d" % (t0, t1, t0))
    a("v_and_b32 v%d, 3, v%d" % (t1, vL15))
    a("v_lshl_add_u32 v%d, v%d, 3, v%d" % (t0, t1, t0))
    a("v_add_u32 v%d, 0x4000, v%d" % (vWBf[0], t0))
    a("v_add_u32 v%d, 0x%x, v%d" % (vWBf[1], 2 * SLOT1, vWBf[0]))

    a("s_waitcnt lgkmcnt(0)")
    mk_srd(a, SX_A, P_AX, 2 << 20); mk_srd(a, SX_B, P_BX, 2 << 20)
    mk_srd(a, S_BRE, P_BRE, 512 << 10); mk_srd(a, S_BIM, P_BIM, 512 << 10)
    mk_srd(a, S_WQ, P_WQKV, 1536 << 10); mk_srd(a, S_WS, P_WS, 256 << 20); mk_srd(a, S_DBG, P_DBG, 256)

    def dma_list(stage):
        slot = stage % 4; base = slot * SLOT1; kt = stage % 8; tag = ('st', stage)
        L = []
        sx = SX_B if stage < 8 else SX_A
        for j in range(4):
            L.append([("s_add_u32 m0, s%d, 0x%x" % (sW1024, base + 4096 * j), None),
                      ("s_mov_b32 s%d, 0x%x" % (sOff, j * 32768 + kt * 128), None),
                      ("buffer_load_dwordx4 v%d, %s, s%d offen lds" % (vXoff, sr(sx, 4), sOff), tag)])
        if stage < 8:
            for jj in range(3):
                L.append([("s_add_u32 m0, s%d, 0x%x" % (sW3072, base + 16384 + 1024 * jj), None),
                          ("s_mov_b32 s%d, 0x%x" % (sOff, kt * 64 * 3072), None),
                          ("buffer_load_dwordx4 v%d, %s, s%d offen lds" % (vWB[jj], sr(S_WQ, 4), sOff), tag)])
        else:
            for jj, sd in enumerate((S_BRE, S_BIM)):
                L.append([("s_add_u32 m0, s%d, 0x%x" % (sW1024, base + 16384 + 4096 * jj), None),
                          ("s_mov_b32 s%d, 0x%x" % (sOff, kt * 128), None),
                          ("buffer_load_dwordx4 v%d, %s, s%d offen lds" % (vWAoff, sr(sd, 4), sOff), tag)])
        return L
    for st in range(3):
        for grp in dma_list(st):
            for s, t in grp: a(s, t)
    a("s_or_b32 s%d, s2, s%d" % (sT0, sW))
    a("s_cmp_lg_u32 s%d, 0" % sT0)
    a("s_cbranch_scc1 K1_NONW")
    a("s_memrealtime s[%d:%d]" % (sRT, sRT + 1))
    a("s_waitcnt lgkmcnt(0)")
    a("s_or_b32 s%d, s%d, 1" % (sRT, sRT))
    a("v_mov_b32 v%d, s%d" % (vTag, sRT))
    a("v_mov_b32 v%d, s%d" % (vTag + 1, sRT + 1))
    a("buffer_store_dwordx2 %s, v%d, %s, 0 offen sc1" % (vr(vTag, 2), vZero, sr(S_DBG, 4)), 'opt')
    a.label("K1_NONW")
    a.nop(2)
    a("s_lshl_b32 s%d, s%d, 6" % (sT0, sCB))
    a("v_lshl_add_u32 v%d, v%d, 1, s%d" % (t0, vL31, sT0))
    pl = big
    a("global_load_ushort v%d, v%d, s[%d:%d]" % (pl + 0, t0, P_LRE, P_LRE + 1), 'par')
    a("global_load_ushort v%d, v%d, s[%d:%d]" % (pl + 1, t0, P_LIM, P_LIM + 1), 'par')
    a("global_load_ushort v%d, v%d, s[%d:%d]" % (pl + 2, t0, P_LDT, P_LDT + 1), 'par')
    a.wait_vm_tag('par')
    lre, lim, ldt = pl + 0, pl + 1, pl + 2
    for x in (lre, lim, ldt): a("v_lshlrev_b32 v%d, 16, v%d" % (x, x))
    dt, aa, bb, mag, sn, cs, nre, inv, e1 = [pl + 3 + i for i in range(9)]
    a("v_mul_f32 v%d, 0x%x, v%d" % (dt, LOG2E, ldt))
    a("v_exp_f32 v%d, v%d" % (dt, dt))
    a("v_cvt_pk_bf16_f32 v%d, v%d, v%d" % (dt, dt, dt))
    a("v_lshlrev_b32 v%d, 16, v%d" % (dt, dt))
    a("v_mul_f32 v%d, v%d, v%d" % (aa, dt, lre))
    a("v_mul_f32 v%d, v%d, v%d" % (bb, dt, lim))
    a("v_mul_f32 v%d, 0x%x, v%d" % (aa, LOG2E, aa))
    a("v_exp_f32 v%d, v%d" % (mag, aa))
    a("v_mul_f32 v%d, 0x%x, v%d" % (bb, INV2PI, bb))
    a("v_fract_f32 v%d, v%d" % (bb, bb))
    a("v_sin_f32 v%d, v%d" % (sn, bb))
    a("v_cos_f32 v%d, v%d" % (cs, bb))
    a("v_mul_f32 v%d, v%d, v%d" % (l1[0], mag, cs))
    a("v_mul_f32 v%d, v%d, v%d" % (l1[1], mag, sn))
    a("v_add_f32 v%d, -1.0, v%d" % (nre, l1[0]))
    a("v_mul_f32 v%d, v%d, v%d" % (inv, lre, lre))
    a("v_fma_f32 v%d, v%d, v%d, v%d" % (inv, lim, lim, inv))
    a("v_rcp_f32 v%d, v%d" % (e1, inv))
    a("v_fma_f32 v%d, -v%d, v%d, 1.0" % (inv, inv, e1))
    a("v_fma_f32 v%d, v%d, v%d, v%d" % (inv, inv, e1, e1))
    a("v_mul_f32 v%d, v%d, v%d" % (coef[0], nre, lre))
    a("v_fma_f32 v%d, v%d, v%d, v%d" % (coef[0], l1[1], lim, coef[0]))
    a("v_mul_f32 v%d, v%d, v%d" % (coef[1], l1[1], lre))
    a("v_fma_f32 v%d, -v%d, v%d, v%d" % (coef[1], nre, lim, coef[1]))
    a("v_mul_f32 v%d, v%d, v%d" % (coef[0], coef[0], inv))
    a("v_mul_f32 v%d, v%d, v%d" % (coef[1], coef[1], inv))
    cmul(a, *l2, *l1, *l1); cmul(a, *l3, *l2, *l1); cmul(a, *l4, *l2, *l2)
    pw = {}
    nx = pl + 16
    def newc():
        nonlocal nx
        r = (nx, nx + 1); nx += 2; return r
    l8 = newc(); cmul(a, *l8, *l4, *l4)
    l16 = newc(); cmul(a, *l16, *l8, *l8)
    l24 = newc(); cmul(a, *l24, *l16, *l8)
    l32 = newc(); cmul(a, *l32, *l16, *l16)
    l64 = newc(); cmul(a, *l64, *l32, *l32)
    l96 = newc(); cmul(a, *l96, *l64, *l32)
    cmul(a, *l128, *l64, *l64)
    Pw = newc()
    a("v_mov_b32 v%d, 1.0" % Pw[0]); a("v_mov_b32 v%d, 0" % Pw[1])
    for wv, src in ((1, l32), (2, l64), (3, l96)):
        a("s_cmp_lg_u32 s%d, %d" % (sW, wv))
        a("s_cbranch_scc1 K1_PW%d" % wv)
        a("v_mov_b32 v%d, v%d" % (Pw[0], src[0])); a("v_mov_b32 v%d, v%d" % (Pw[1], src[1]))
        a.label("K1_PW%d" % wv)
    Ph = newc()
    a("v_mov_b32 v%d, 1.0" % Ph[0]); a("v_mov_b32 v%d, 0" % Ph[1])
    a("v_cndmask_b32 v%d, v%d, v%d, s[%d:%d]" % (Ph[0], Ph[0], l4[0], sM1, sM1 + 1))
    a("v_cndmask_b32 v%d, v%d, v%d, s[%d:%d]" % (Ph[1], Ph[1], l4[1], sM1, sM1 + 1))
    cmul(a, *Q[0], *Pw, *Ph)
    cmul(a, *Q[1], *Q[0], *l8); cmul(a, *Q[2], *Q[0], *l16); cmul(a, *Q[3], *Q[0], *l24)

    def readsB(stage):
        slot = stage % 4; st = slot >> 1; loc = (slot & 1) * SLOT1
        def f(j, s_):
            fr = frag[s_]
            L = ["ds_read_b128 %s, v%d offset:%d" % (vr(fr, 4), vXf[st][j], loc)]
            for tl in range(3):
                for u in range(2):
                    L.append("ds_read_b64_tr_b16 %s, v%d offset:%d" % (vr(fr + 4 + 4 * tl + 2 * u, 2), vWBf[st], loc + j * 3072 + u * 768 + tl * 64))
            return L
        return f
    def mfmaB(j, s_, first):
        fr = frag[s_]
        return ["v_mfma_f32_32x32x16_bf16 %s, %s, %s, %s" % (vr(accB[tl], 16), vr(fr, 4), vr(fr + 4 + 4 * tl, 4), "0" if first else vr(accB[tl], 16)) for tl in range(3)]
    def readsA(stage):
        slot = stage % 4; st = slot >> 1; loc = (slot & 1) * SLOT1
        def f(j, s_):
            fr = frag[s_]
            return ["ds_read_b128 %s, v%d offset:%d" % (vr(fr, 4), vXf[st][j], loc),
                    "ds_read_b128 %s, v%d offset:%d" % (vr(fr + 4, 4), vWAf[st][j], loc),
                    "ds_read_b128 %s, v%d offset:%d" % (vr(fr + 8, 4), vWAf[st][j], loc + 4096)]
        return f
    def mfmaA(j, s_, first):
        fr = frag[s_]
        return ["v_mfma_f32_32x32x16_bf16 %s, %s, %s, %s" % (vr(accA[tl], 16), vr(fr, 4), vr(fr + 4 + 4 * tl, 4), "0" if first else vr(accA[tl], 16)) for tl in range(2)]

    for stage in range(8):
        emit_iter(a, stage, readsB(stage), mfmaB, dma_list(stage + 3), stage == 0)
        if stage == 4:
            a("buffer_load_dwordx2 %s, v%d, %s, 0 offen sc1" % (vr(vTag, 2), vZero, sr(S_DBG, 4)), 'nonce')

    a.nop(12)
    qa, ka, va = accB
    PQp = big
    PKp = big + 8
    VVp = big + 16
    zs = big + 24
    tt = big + 26
    D2 = big + 48
    for p in range(8):
        a("v_cvt_pk_bf16_f32 v%d, v%d, v%d" % (VVp + p, va + 2 * p, va + 2 * p + 1))
    a("s_mov_b32 s%d, 0x%x" % (sT0, LOG2E))
    a("s_mov_b32 s%d, 0x%x" % (sT1, EPS6))
    def phi_pairs(src, dst, wantsum):
        for p in range(8):
            x0, x1, e0, e1_, s0, s1 = tt, tt + 1, tt + 2, tt + 3, tt + 4, tt + 5
            a("v_cvt_pk_bf16_f32 v%d, v%d, v%d" % (x1, src + 2 * p, src + 2 * p + 1))
            a("v_lshlrev_b32 v%d, 16, v%d" % (x0, x1))
            a("v_and_b32 v%d, 0xffff0000, v%d" % (x1, x1))
            a("v_mul_f32 v%d, s%d, v%d" % (e0, sT0, x0))
            a("v_mul_f32 v%d, s%d, v%d" % (e1_, sT0, x1))
            a("v_exp_f32 v%d, v%d" % (e0, e0))
            a("v_exp_f32 v%d, v%d" % (e1_, e1_))
            a("v_cmp_lt_f32 s[%d:%d], 0, v%d" % (sSave, sSave + 1, x0))
            a("v_cmp_lt_f32 vcc, 0, v%d" % x1)
            a("v_add_f32 v%d, 1.0, v%d" % (x0, x0))
            a("v_add_f32 v%d, 1.0, v%d" % (x1, x1))
            a("v_cndmask_b32 v%d, v%d, v%d, s[%d:%d]" % (e0, e0, x0, sSave, sSave + 1))
            a("v_cndmask_b32 v%d, v%d, v%d, vcc" % (e1_, e1_, x1))
            a("v_cvt_pk_bf16_f32 v%d, v%d, v%d" % (x1, e0, e1_))
            a("v_lshlrev_b32 v%d, 16, v%d" % (x0, x1))
            a("v_and_b32 v%d, 0xffff0000, v%d" % (x1, x1))
            a("v_add_f32 v%d, s%d, v%d" % (x0, sT1, x0))
            a("v_add_f32 v%d, s%d, v%d" % (x1, sT1, x1))
            a("v_cvt_pk_bf16_f32 v%d, v%d, v%d" % (dst + p, x0, x1))
            if wantsum:
                a("v_lshlrev_b32 v%d, 16, v%d" % (x0, dst + p))
                a("v_and_b32 v%d, 0xffff0000, v%d" % (x1, dst + p))
                if p == 0:
                    a("v_add_f32 v%d, v%d, v%d" % (zs, x0, x1))
                else:
                    a("v_add_f32 v%d, v%d, v%d" % (zs, zs, x0))
                    a("v_add_f32 v%d, v%d, v%d" % (zs, zs, x1))
    phi_pairs(ka, PKp, True)
    a("v_mfma_f32_32x32x16_bf16 %s, %s, %s, 0" % (vr(D2, 16), vr(PKp, 4), vr(VVp, 4)))
    a("v_mfma_f32_32x32x16_bf16 %s, %s, %s, %s" % (vr(D2, 16), vr(PKp + 4, 4), vr(VVp + 4, 4), vr(D2, 16)))
    phi_pairs(qa, PQp, False)
    a("s_lshl_b32 s%d, s%d, 11" % (sT2, sW))
    a("s_add_u32 s%d, s%d, 0x%x" % (sT2, sT2, L_PQ))
    a("v_lshlrev_b32 v%d, 8, v%d" % (t0, vHf))
    a("v_lshl_add_u32 v%d, v%d, 1, v%d" % (t0, vL31, t0))
    a("v_add_u32 v%d, s%d, v%d" % (t0, sT2, t0))
    for p in range(8):
        i = 2 * p
        off = ((i >> 2) * 8 + (i & 3)) * 64
        a("ds_write_b16 v%d, v%d offset:%d" % (t0, PQp + p, off))
        a("ds_write_b16_d16_hi v%d, v%d offset:%d" % (t0, PQp + p, off + 64))
    a("s_lshl_b32 s%d, s%d, 8" % (sT2, sW))
    a("s_add_u32 s%d, s%d, 0x%x" % (sT2, sT2, L_REDZ))
    a("v_lshlrev_b32 v%d, 2, v%d" % (t1, vLane))
    a("v_add_u32 v%d, s%d, v%d" % (t1, sT2, t1))
    a("ds_write_b32 v%d, v%d" % (t1, zs))
    a("s_lshl_b32 s%d, s%d, 11" % (sT2, sW))
    a("s_add_u32 s%d, s%d, 0x%x" % (sT2, sT2, L_RED))
    a("v_lshrrev_b32 v%d, 4, v%d" % (t2, vL31))
    a("v_lshlrev_b32 v%d, 10, v%d" % (t2, t2))
    a("v_lshl_add_u32 v%d, v%d, 8, v%d" % (t2, vHf, t2))
    a("v_lshl_add_u32 v%d, v%d, 2, v%d" % (t2, vL15, t2))
    a("v_add_u32 v%d, s%d, v%d" % (t2, sT2, t2))
    for i in range(8):
        a("v_cndmask_b32 v%d, v%d, v%d, s[%d:%d]" % (tt + i, D2 + 8 + i, D2 + i, sLt16, sLt16 + 1))
    for i in range(8):
        a("ds_write_b32 v%d, v%d offset:%d" % (t2, tt + i, ((i >> 2) * 8 + (i & 3)) * 64))
    a.wait_vm_tag('nonce')
    a("v_cmp_eq_u32 vcc, 0, v%d" % vTag)
    a("s_cbranch_vccz K1_NOK")
    a("s_mov_b32 s%d, %d" % (sCnt, SPIN))
    a.label("K1_NRETRY")
    a.raw("    buffer_load_dwordx2 %s, v%d, %s, 0 offen sc1" % (vr(vTag, 2), vZero, sr(S_DBG, 4)))
    a.raw("    s_waitcnt vmcnt(0)")
    a.raw("    v_cmp_eq_u32 vcc, 0, v%d" % vTag)
    a.raw("    s_nop 4")
    a.raw("    s_cbranch_vccz K1_NOK")
    a.raw("    s_sub_u32 s%d, s%d, 1" % (sCnt, sCnt))
    a.raw("    s_cmp_lg_u32 s%d, 0" % sCnt)
    a.raw("    s_cbranch_scc1 K1_NRETRY")
    a.label("K1_NOK")
    a.nop(4)
    a("s_waitcnt lgkmcnt(0)")
    a("s_barrier")
    a("v_lshlrev_b32 v%d, 3, v0" % t0)
    rr = big + 32
    a("v_add_u32 v%d, 0x%x, v%d" % (t4, L_RED, t0))
    for w_ in range(4):
        a("ds_read_b64 %s, v%d offset:%d" % (vr(rr + 2 * w_, 2), t4, w_ * 2048))
    a("s_lshl_b32 s%d, s%d, 5" % (sT2, sW))
    a("s_add_u32 s%d, s%d, 0x%x" % (sT2, sT2, L_REDZ))
    a("v_and_b32 v%d, 3, v%d" % (t1, vLane))
    a("v_lshl_add_u32 v%d, v%d, 3, s%d" % (t1, t1, sT2))
    zz = big + 40
    for k_ in range(8):
        a("ds_read_b64 %s, v%d offset:%d" % (vr(zz + 2 * k_, 2), t1, k_ * 128))
    G = big2
    GZ = big2 + 4
    a("s_waitcnt lgkmcnt(8)")
    a("v_add_f32 v%d, v%d, v%d" % (G, rr, rr + 2)); a("v_add_f32 v%d, v%d, v%d" % (G + 1, rr + 1, rr + 3))
    a("v_add_f32 v%d, v%d, v%d" % (G, G, rr + 4)); a("v_add_f32 v%d, v%d, v%d" % (G + 1, G + 1, rr + 5))
    a("v_add_f32 v%d, v%d, v%d" % (G, G, rr + 6)); a("v_add_f32 v%d, v%d, v%d" % (G + 1, G + 1, rr + 7))
    a("v_mov_b32 v%d, v%d" % (G + 2, vTag)); a("v_mov_b32 v%d, v%d" % (G + 3, vTag + 1))
    a("s_lshl_b32 s%d, s%d, 4" % (sT2, sCB))
    a("s_add_u32 s%d, s%d, s%d" % (sT2, sT2, sR))
    a("s_mul_i32 s%d, s%d, 4352" % (sT2, sT2))
    a("s_add_u32 s%d, s%d, 0x%x" % (sT2, sT2, WS_KG))
    a("v_lshl_add_u32 v%d, v0, 4, s%d" % (t2, sT2))
    a("buffer_store_dwordx4 %s, v%d, %s, 0 offen sc1" % (vr(G, 4), t2, sr(S_WS, 4)), 'kvpub')
    a("s_waitcnt lgkmcnt(0)")
    a("v_add_f32 v%d, v%d, v%d" % (GZ, zz, zz + 2)); a("v_add_f32 v%d, v%d, v%d" % (GZ + 1, zz + 1, zz + 3))
    for k_ in range(2, 8):
        a("v_add_f32 v%d, v%d, v%d" % (GZ, GZ, zz + 2 * k_)); a("v_add_f32 v%d, v%d, v%d" % (GZ + 1, GZ + 1, zz + 2 * k_ + 1))
    a("v_mov_b32 v%d, v%d" % (GZ + 2, vTag)); a("v_mov_b32 v%d, v%d" % (GZ + 3, vTag + 1))
    a("s_lshl_b32 s%d, s%d, 6" % (sT1, sW))
    a("s_add_u32 s%d, s%d, s%d" % (sT2, sT2, sT1))
    a("s_add_u32 s%d, s%d, 4096" % (sT2, sT2))
    a("v_and_b32 v%d, 3, v%d" % (t1, vLane))
    a("v_lshl_add_u32 v%d, v%d, 4, s%d" % (t3, t1, sT2))
    a("buffer_store_dwordx4 %s, v%d, %s, 0 offen sc1" % (vr(GZ, 4), t3, sr(S_WS, 4)), 'kvpub')

    for stage in range(8, 16):
        emit_iter(a, stage, readsA(stage), mfmaA, dma_list(stage + 3) if stage + 3 < 16 else [], stage == 8)

    a.nop(12)
    ar, ai = accA
    ur = accB[0]
    ui = ai
    for i in range(16):
        a("v_mul_f32 v%d, v%d, v%d" % (ur + i, coef[0], ar + i))
        a("v_fma_f32 v%d, -v%d, v%d, v%d" % (ur + i, coef[1], ai + i, ur + i))
        a("v_mul_f32 v%d, v%d, v%d" % (ai + i, coef[0], ai + i))
        a("v_fma_f32 v%d, v%d, v%d, v%d" % (ai + i, coef[1], ar + i, ai + i))
    for i3 in range(1, 4):
        for g in range(4):
            idx = 4 * g + i3
            cfma(a, ur + idx, ui + idx, l1[0], l1[1], ur + idx - 1, ui + idx - 1, ur + idx, ui + idx)
    a("s_lshl_b32 s%d, s%d, 11" % (sT2, sW))
    a("s_add_u32 s%d, s%d, 0x%x" % (sT2, sT2, L_SEGE))
    a("v_lshl_add_u32 v%d, v%d, 3, s%d" % (t0, vLane, sT2))
    for g in range(4):
        a("ds_write_b32 v%d, v%d offset:%d" % (t0, ur + 4 * g + 3, g * 512))
        a("ds_write_b32 v%d, v%d offset:%d" % (t0, ui + 4 * g + 3, g * 512 + 4))
    a("s_waitcnt lgkmcnt(0)")
    a("s_barrier")
    cA = (big + 16, big + 17); cB = (big + 18, big + 19)
    a("v_mov_b32 v%d, 0" % cA[0]); a("v_mov_b32 v%d, 0" % cA[1])
    a("v_lshlrev_b32 v%d, 3, v%d" % (t0, vL31))
    a("v_add_u32 v%d, 0x%x, v%d" % (t0, L_SEGE, t0))
    a("s_mov_b32 s%d, 0" % sT0)
    a.nop(4)
    a.label("K1_CHAIN")
    for kk in range(8):
        a("ds_read_b64 %s, v%d offset:%d" % (vr(big + 2 * kk, 2), t0, kk * 256))
    a("v_add_u32 v%d, 0x800, v%d" % (t0, t0))
    for kk in range(8):
        a("s_waitcnt lgkmcnt(%d)" % (7 - kk))
        c, n = (cA, cB) if kk % 2 == 0 else (cB, cA)
        m = sM0 if kk % 2 == 0 else sM1
        a("v_cndmask_b32 v%d, v%d, v%d, s[%d:%d]" % (cg[kk >> 1][0], cg[kk >> 1][0], c[0], m, m + 1))
        a("v_cndmask_b32 v%d, v%d, v%d, s[%d:%d]" % (cg[kk >> 1][1], cg[kk >> 1][1], c[1], m, m + 1))
        cfma(a, n[0], n[1], l4[0], l4[1], c[0], c[1], big + 2 * kk, big + 2 * kk + 1)
    a("s_add_u32 s%d, s%d, 1" % (sT0, sT0))
    a("s_cmp_le_u32 s%d, s%d" % (sT0, sW))
    a("s_cbranch_scc1 K1_CHAIN")
    a.nop(4)
    a("s_cmp_lg_u32 s%d, 3" % sW)
    a("s_cbranch_scc1 K1_NOPUB")
    a("v_mov_b32 v%d, v%d" % (G, cA[0])); a("v_mov_b32 v%d, v%d" % (G + 1, cA[1]))
    a("v_mov_b32 v%d, v%d" % (G + 2, vTag)); a("v_mov_b32 v%d, v%d" % (G + 3, vTag + 1))
    a("s_lshl_b32 s%d, s%d, 4" % (sT2, sCB))
    a("s_add_u32 s%d, s%d, s%d" % (sT2, sT2, sR))
    a("s_lshl_b32 s%d, s%d, 9" % (sT2, sT2))
    a("s_add_u32 s%d, s%d, 0x%x" % (sT2, sT2, WS_EG))
    a("v_lshl_add_u32 v%d, v%d, 4, s%d" % (t2, vL31, sT2))
    a("buffer_store_dwordx4 %s, v%d, %s, 0 offen sc1" % (vr(G, 4), t2, sr(S_WS, 4)), 'opt')
    a.label("K1_NOPUB")
    a.nop(4)

    KD = big
    ZD = accB[1]
    a("s_mul_i32 s%d, s%d, %d" % (sT2, sCB, 16 * 4352))
    a("s_add_u32 s%d, s%d, 0x%x" % (sT2, sT2, WS_KG))
    a("v_lshl_add_u32 v%d, v0, 4, s%d" % (t2, sT2))
    a("s_lshl_b32 s%d, s%d, 6" % (sT1, sW))
    a("s_add_u32 s%d, s%d, s%d" % (sT2, sT2, sT1))
    a("s_add_u32 s%d, s%d, 4096" % (sT2, sT2))
    a("v_and_b32 v%d, 3, v%d" % (t1, vLane))
    a("v_lshl_add_u32 v%d, v%d, 4, s%d" % (t3, t1, sT2))
    a("s_mov_b32 s%d, %d" % (sCnt, SPIN))
    a.nop(4)
    a.label("K1_KVP")
    mm = t0
    zsum = (big2 + 8, big2 + 9)
    for r_ in range(16):
        a("s_mov_b32 s%d, %d" % (sOff, r_ * 4352))
        a("buffer_load_dwordx4 %s, v%d, %s, s%d offen sc1" % (vr(KD + 4 * r_, 4), t2, sr(S_WS, 4), sOff))
    for r_ in range(8):
        a("s_mov_b32 s%d, %d" % (sOff, r_ * 4352))
        a("buffer_load_dwordx4 %s, v%d, %s, s%d offen sc1" % (vr(ZD + 4 * r_, 4), t3, sr(S_WS, 4), sOff))
    a("s_waitcnt vmcnt(0)")
    a("v_mov_b32 v%d, 0" % mm)
    def chk(base, n):
        for r_ in range(n):
            a("v_xor_b32 v%d, v%d, v%d" % (t4, base + 4 * r_ + 2, vTag))
            a("v_xor_b32 v%d, v%d, v%d" % (t1, base + 4 * r_ + 3, vTag + 1))
            a("v_or3_b32 v%d, v%d, v%d, v%d" % (mm, mm, t4, t1))
    chk(ZD, 8)
    a("v_add_f32 v%d, v%d, v%d" % (zsum[0], ZD, ZD + 4)); a("v_add_f32 v%d, v%d, v%d" % (zsum[1], ZD + 1, ZD + 5))
    for r_ in range(2, 8):
        a("v_add_f32 v%d, v%d, v%d" % (zsum[0], zsum[0], ZD + 4 * r_)); a("v_add_f32 v%d, v%d, v%d" % (zsum[1], zsum[1], ZD + 4 * r_ + 1))
    a.nop(2)
    for r_ in range(8):
        a("s_mov_b32 s%d, %d" % (sOff, (r_ + 8) * 4352))
        a("buffer_load_dwordx4 %s, v%d, %s, s%d offen sc1" % (vr(ZD + 4 * r_, 4), t3, sr(S_WS, 4), sOff))
    chk(KD, 16)
    a("s_waitcnt vmcnt(0)")
    chk(ZD, 8)
    for r_ in range(8):
        a("v_add_f32 v%d, v%d, v%d" % (zsum[0], zsum[0], ZD + 4 * r_)); a("v_add_f32 v%d, v%d, v%d" % (zsum[1], zsum[1], ZD + 4 * r_ + 1))
    a("v_cmp_ne_u32 vcc, 0, v%d" % mm)
    a("s_cbranch_vccz K1_KVOK")
    a("s_sleep 2")
    a("s_sub_u32 s%d, s%d, 1" % (sCnt, sCnt))
    a("s_cmp_lg_u32 s%d, 0" % sCnt)
    a("s_cbranch_scc1 K1_KVP")
    a.label("K1_KVOK")
    a.nop(4)
    ks = (big2 + 10, big2 + 11)
    a("v_add_f32 v%d, v%d, v%d" % (ks[0], KD, KD + 4)); a("v_add_f32 v%d, v%d, v%d" % (ks[1], KD + 1, KD + 5))
    for r_ in range(2, 16):
        a("v_add_f32 v%d, v%d, v%d" % (ks[0], ks[0], KD + 4 * r_)); a("v_add_f32 v%d, v%d, v%d" % (ks[1], ks[1], KD + 4 * r_ + 1))
    a("v_cvt_pk_bf16_f32 v%d, v%d, v%d" % (ks[0], ks[0], ks[1]))
    a("v_cvt_pk_bf16_f32 v%d, v%d, v%d" % (zsum[0], zsum[0], zsum[1]))
    a("v_lshrrev_b32 v%d, 7, v0" % t0)
    a("v_lshlrev_b32 v%d, 10, v%d" % (t0, t0))
    a("v_bfe_u32 v%d, v0, 3, 4" % t1)
    a("v_lshl_add_u32 v%d, v%d, 1, v%d" % (t0, t1, t0))
    a("v_bfe_u32 v%d, v0, 1, 1" % t1)
    a("v_lshl_add_u32 v%d, v%d, 8, v%d" % (t0, t1, t0))
    a("v_bfe_u32 v%d, v0, 2, 1" % t1)
    a("v_lshl_add_u32 v%d, v%d, 7, v%d" % (t0, t1, t0))
    a("v_and_b32 v%d, 1, v0" % t1)
    a("v_lshl_add_u32 v%d, v%d, 6, v%d" % (t0, t1, t0))
    a("v_add_u32 v%d, 0x%x, v%d" % (t0, L_KVT, t0))
    a("ds_write_b16 v%d, v%d" % (t0, ks[0]))
    a("ds_write_b16_d16_hi v%d, v%d offset:32" % (t0, ks[0]))
    a("v_and_b32 v%d, 3, v%d" % (t1, vLane))
    a("s_lshl_b32 s%d, s%d, 2" % (sT2, sW))
    a("v_add_u32 v%d, s%d, v%d" % (t1, sT2, t1))
    a("v_lshrrev_b32 v%d, 3, v%d" % (t2, t1))
    a("v_lshlrev_b32 v%d, 10, v%d" % (t2, t2))
    a("v_and_b32 v%d, 7, v%d" % (t1, t1))
    a("v_lshl_add_u32 v%d, v%d, 2, v%d" % (t2, t1, t2))
    a("v_add_u32 v%d, 0x%x, v%d" % (t2, L_KVT + 16 * 32, t2))
    a("ds_write_b32 v%d, v%d" % (t2, zsum[0]))
    a("ds_write_b32 v%d, v%d offset:128" % (t2, zsum[0]))
    a("s_waitcnt lgkmcnt(0)")
    a("s_barrier")
    a("v_lshlrev_b32 v%d, 5, v%d" % (t0, vL31))
    a("v_lshl_add_u32 v%d, v%d, 4, v%d" % (t0, vHf, t0))
    a("v_add_u32 v%d, 0x%x, v%d" % (t0, L_KVT, t0))
    a("v_lshlrev_b32 v%d, 6, v%d" % (t1, vL31))
    a("v_lshl_add_u32 v%d, v%d, 4, v%d" % (t1, vHf, t1))
    a("s_lshl_b32 s%d, s%d, 11" % (sT2, sW))
    a("s_add_u32 s%d, s%d, 0x%x" % (sT2, sT2, L_PQ))
    a("v_add_u32 v%d, s%d, v%d" % (t1, sT2, t1))
    FA = big; FB = big + 8; DO = big + 16
    for hd in range(2):
        a("ds_read_b128 %s, v%d offset:%d" % (vr(FA + 4 * hd, 4), t0, hd * 1024))
        a("ds_read_b128 %s, v%d offset:%d" % (vr(FB + 4 * hd, 4), t1, hd * 32))
    a("s_waitcnt lgkmcnt(0)")
    for hd in range(2):
        a("v_mfma_f32_32x32x16_bf16 %s, %s, %s, 0" % (vr(DO + 16 * hd, 16), vr(FA + 4 * hd, 4), vr(FB + 4 * hd, 4)))
    a("s_lshl_b32 s%d, s%d, 17" % (sT2, sR))
    a("s_lshl_b32 s%d, s%d, 15" % (sT1, sW))
    a("s_add_u32 s%d, s%d, s%d" % (sT2, sT2, sT1))
    a("s_lshl_b32 s%d, s%d, 6" % (sT1, sCB))
    a("s_add_u32 s%d, s%d, s%d" % (sT2, sT2, sT1))
    a("s_add_u32 s%d, s%d, 0x%x" % (sT2, sT2, WS_O))
    a("v_lshlrev_b32 v%d, 10, v%d" % (t2, vL31))
    a("v_lshl_add_u32 v%d, v%d, 4, v%d" % (t2, vHf, t2))
    a("v_add_u32 v%d, s%d, v%d" % (t2, sT2, t2))
    a("s_mov_b32 s%d, 0x%x" % (sT1, EPS6))
    OQ = big2 + 12
    for hd in range(2):
        D = DO + 16 * hd
        den, rc, qq, ee, n0, n1 = big + 48, big + 49, big + 50, big + 51, big + 52, big + 53
        a("v_cvt_pk_bf16_f32 v%d, v%d, v%d" % (den, D + 8, D + 8))
        a("v_lshlrev_b32 v%d, 16, v%d" % (den, den))
        a("v_add_f32 v%d, s%d, v%d" % (den, sT1, den))
        a("v_cvt_pk_bf16_f32 v%d, v%d, v%d" % (den, den, den))
        a("v_lshlrev_b32 v%d, 16, v%d" % (den, den))
        a("v_rcp_f32 v%d, v%d" % (rc, den))
        for p in range(4):
            a("v_cvt_pk_bf16_f32 v%d, v%d, v%d" % (n1, D + 2 * p, D + 2 * p + 1))
            a("v_lshlrev_b32 v%d, 16, v%d" % (n0, n1))
            a("v_and_b32 v%d, 0xffff0000, v%d" % (n1, n1))
            for n_, q_ in ((n0, D + 2 * p), (n1, D + 2 * p + 1)):
                a("v_mul_f32 v%d, v%d, v%d" % (q_, n_, rc))
                a("v_fma_f32 v%d, -v%d, v%d, v%d" % (ee, q_, den, n_))
                a("v_fma_f32 v%d, v%d, v%d, v%d" % (q_, ee, rc, q_))
            a("v_cvt_pk_bf16_f32 v%d, v%d, v%d" % (OQ + 4 * hd + p, D + 2 * p, D + 2 * p + 1))
        a("buffer_store_dwordx4 %s, v%d, %s, 0 offen offset:%d" % (vr(OQ + 4 * hd, 4), t2, sr(S_WS, 4), hd * 32), 'ost')

    ED = big
    a("s_lshl_b32 s%d, s%d, 13" % (sT2, sCB))
    a("s_add_u32 s%d, s%d, 0x%x" % (sT2, sT2, WS_EG))
    a("v_lshl_add_u32 v%d, v%d, 4, s%d" % (t2, vL31, sT2))
    a("s_mov_b32 s%d, 4096" % sT1)
    a("s_mov_b32 s%d, %d" % (sCnt, SPIN))
    a.nop(4)
    a.label("K1_EP")
    for r_ in range(15):
        a("buffer_load_dwordx4 %s, v%d, %s, %s offen offset:%d sc1" % (vr(ED + 4 * r_, 4), t2, sr(S_WS, 4), "0" if r_ < 8 else "s%d" % sT1, (r_ & 7) * 512))
    a("s_waitcnt vmcnt(0)")
    a("v_mov_b32 v%d, 0" % mm)
    for r_ in range(15):
        a("s_cmp_le_u32 s%d, %d" % (sR, r_))
        a("s_cbranch_scc1 K1_ECHK")
        a("v_xor_b32 v%d, v%d, v%d" % (t4, ED + 4 * r_ + 2, vTag))
        a("v_xor_b32 v%d, v%d, v%d" % (t1, ED + 4 * r_ + 3, vTag + 1))
        a("v_or3_b32 v%d, v%d, v%d, v%d" % (mm, mm, t4, t1))
    a.label("K1_ECHK")
    a.nop(2)
    a("v_cmp_ne_u32 vcc, 0, v%d" % mm)
    a("s_cbranch_vccz K1_EOK")
    a("s_sleep 2")
    a("s_sub_u32 s%d, s%d, 1" % (sCnt, sCnt))
    a("s_cmp_lg_u32 s%d, 0" % sCnt)
    a("s_cbranch_scc1 K1_EP")
    a.label("K1_EOK")
    a.nop(4)
    cc = (big2 + 0, big2 + 1); cn = (big2 + 2, big2 + 3)
    a("v_mov_b32 v%d, 0" % cc[0]); a("v_mov_b32 v%d, 0" % cc[1])
    for r_ in range(15):
        a("s_cmp_le_u32 s%d, %d" % (sR, r_))
        a("s_cbranch_scc1 K1_ECH")
        cfma(a, cn[0], cn[1], l128[0], l128[1], cc[0], cc[1], ED + 4 * r_, ED + 4 * r_ + 1)
        a("v_mov_b32 v%d, v%d" % (cc[0], cn[0])); a("v_mov_b32 v%d, v%d" % (cc[1], cn[1]))
    a.label("K1_ECH")
    a.nop(2)
    for g in range(4):
        cfma(a, cg[g][0], cg[g][1], Q[g][0], Q[g][1], cc[0], cc[1], cg[g][0], cg[g][1])
    lp = [l1, l2, l3, l4]
    HP = big + 32
    for i in range(16):
        g = i >> 2; L = lp[i & 3]
        cfma(a, ur + i, ui + i, L[0], L[1], cg[g][0], cg[g][1], ur + i, ui + i)
        a("v_cvt_pk_bf16_f32 v%d, v%d, -v%d" % (HP + i, ur + i, ui + i))
    a("s_lshl_b32 s%d, s%d, 12" % (sT2, sW))
    a("v_lshlrev_b32 v%d, 9, v%d" % (t0, vHf))
    a("v_lshl_add_u32 v%d, v%d, 1, v%d" % (t0, vL31, t0))
    a("v_add_u32 v%d, s%d, v%d" % (t0, sT2, t0))
    for i in range(16):
        off = ((i >> 2) * 8 + (i & 3)) * 128
        a("ds_write_b16 v%d, v%d offset:%d" % (t0, HP + i, off))
        a("ds_write_b16_d16_hi v%d, v%d offset:%d" % (t0, HP + i, off + 64))
    a("v_lshl_add_u32 v%d, v%d, 4, s%d" % (t1, vLane, sT2))
    a("s_waitcnt lgkmcnt(0)")
    for n in range(4):
        a("ds_read_b128 %s, v%d offset:%d" % (vr(big + 4 * n, 4), t1, n * 1024))
    a("s_lshl_b32 s%d, s%d, 18" % (sT2, sR))
    a("s_lshl_b32 s%d, s%d, 16" % (sT1, sW))
    a("s_add_u32 s%d, s%d, s%d" % (sT2, sT2, sT1))
    a("s_lshl_b32 s%d, s%d, 6" % (sT1, sCB))
    a("s_add_u32 s%d, s%d, s%d" % (sT2, sT2, sT1))
    a("v_lshrrev_b32 v%d, 3, v%d" % (t2, vLane))
    a("v_lshlrev_b32 v%d, 11, v%d" % (t2, t2))
    a("v_bfe_u32 v%d, v%d, 2, 1" % (t3, vLane))
    a("v_lshl_add_u32 v%d, v%d, 10, v%d" % (t2, t3, t2))
    a("v_and_b32 v%d, 3, v%d" % (t3, vLane))
    a("v_lshl_add_u32 v%d, v%d, 4, v%d" % (t2, t3, t2))
    a("v_add_u32 v%d, s%d, v%d" % (t2, sT2, t2))
    for n in range(4):
        a("s_waitcnt lgkmcnt(%d)" % (3 - n))
        a("s_mov_b32 s%d, %d" % (sOff, n * 16384))
        a("buffer_store_dwordx4 %s, v%d, %s, s%d offen" % (vr(big + 4 * n, 4), t2, sr(S_WS, 4), sOff))
    a.label("K1_END")
    a("s_endpgm")
    return V.hi

SLOT2 = 24576
NS2 = 4
LDS2 = SLOT2 * NS2
def gen_k2(a):
    a.vm = []
    a.raw(".globl %s_k2_kernel\n.p2align 8\n.type %s_k2_kernel,@function\n%s_k2_kernel:" % (NAME, NAME, NAME))
    a("s_cmp_ge_u32 s2, 256")
    a("s_cbranch_scc1 K2_END")
    load_ptrs(a)
    sW, sRT, sNB, sTY = 3, 4, 5, 6
    S_WS, S_CRE, S_CIM, S_WO, S_OUT, S_XA = 8, 12, 16, 20, 24, 28
    sT0, sT1, sT2, sW1024, sOff = 66, 67, 68, 70, 72
    V = Alloc(1)
    vLane, vL31, vHf, vL15, vG4 = V(), V(), V(), V(), V()
    vT = [V() for _ in range(6)]
    vXoff, vWoff = V(), [V(), V()]
    vXf = [[V() for _ in range(4)] for _ in range(2)]
    vWf = [[V() for _ in range(4)] for _ in range(2)]
    vWT = [V(), V()]
    vOut = V()
    frag = [V(12, 4) for _ in range(2)]
    acc = [V(16, 4) for _ in range(2)]
    xd = V(32, 4)
    dsk = V(2, 2)
    print("K2 vgprs", V.hi, file=sys.stderr)
    t0, t1, t2, t3, t4 = vT[:5]
    a("v_and_b32 v%d, 63, v0" % vLane)
    a("v_lshrrev_b32 v%d, 6, v0" % t0)
    a("v_readfirstlane_b32 s%d, v%d" % (sW, t0))
    a("s_and_b32 s%d, s2, 7" % sT0)
    a("s_lshr_b32 s%d, s2, 3" % sT1)
    a("s_lshr_b32 s%d, s%d, 4" % (sTY, sT1))
    a("s_and_b32 s%d, s%d, 15" % (sT1, sT1))
    a("s_lshr_b32 s%d, s%d, 1" % (sRT, sT0))
    a("s_lshl_b32 s%d, s%d, 2" % (sRT, sRT))
    a("s_lshr_b32 s%d, s%d, 2" % (sT2, sT1))
    a("s_add_u32 s%d, s%d, s%d" % (sRT, sRT, sT2))
    a("s_and_b32 s%d, s%d, 1" % (sNB, sT0))
    a("s_lshl_b32 s%d, s%d, 2" % (sNB, sNB))
    a("s_and_b32 s%d, s%d, 3" % (sT2, sT1))
    a("s_add_u32 s%d, s%d, s%d" % (sNB, sNB, sT2))
    a("s_lshl_b32 s%d, s%d, 10" % (sW1024, sW))
    a("v_and_b32 v%d, 31, v0" % vL31)
    a("v_lshrrev_b32 v%d, 5, v%d" % (vHf, vLane))
    a("v_and_b32 v%d, 15, v0" % vL15)
    a("v_lshrrev_b32 v%d, 4, v%d" % (vG4, vLane))
    a("s_lshl_b32 s%d, s%d, 2" % (sT0, sW))
    a("v_add_u32 v%d, s%d, v%d" % (t0, sT0, vG4))
    a("v_xor_b32 v%d, v%d, v%d" % (t1, vL15, t0))
    a("v_lshrrev_b32 v%d, 3, v%d" % (t2, t1))
    a("v_and_b32 v%d, 7, v%d" % (t1, t1))
    a("v_lshlrev_b32 v%d, 1, v%d" % (t0, t0))
    a("v_add_u32 v%d, v%d, v%d" % (t0, t0, t2))
    rowv, cv = vT[5], t4
    a("v_mov_b32 v%d, v%d" % (rowv, t0)); a("v_lshlrev_b32 v%d, 4, v%d" % (cv, t1))
    a("v_lshrrev_b32 v%d, 1, v%d" % (t0, vL31))
    a("v_and_b32 v%d, 1, v%d" % (t1, vL31))
    a("v_lshl_add_u32 v%d, v%d, 3, v%d" % (t1, t1, vHf))
    a("v_xor_b32 v%d, v%d, v%d" % (t1, t1, t0))
    a("v_lshlrev_b32 v%d, 4, v%d" % (t1, t1))
    a("v_lshl_add_u32 v%d, v%d, 8, v%d" % (t1, t0, t1))
    a("s_lshl_b32 s%d, s%d, 12" % (sT0, sW))
    for j in range(4):
        a("v_xor_b32 v%d, %d, v%d" % (t2, 32 * j, t1))
        a("v_add_u32 v%d, s%d, v%d" % (vXf[0][j], sT0, t2))
        a("v_add_u32 v%d, 0x%x, v%d" % (vXf[1][j], 2 * SLOT2, vXf[0][j]))
        a("v_add_u32 v%d, 0x4000, v%d" % (vWf[0][j], t2))
        a("v_add_u32 v%d, 0x%x, v%d" % (vWf[1][j], 2 * SLOT2, vWf[0][j]))
    a("v_lshrrev_b32 v%d, 2, v%d" % (t0, vL15))
    a("v_lshl_add_u32 v%d, v%d, 3, v%d" % (t1, vHf, t0))
    a("v_lshlrev_b32 v%d, 7, v%d" % (t1, t1))
    a("v_and_b32 v%d, 1, v%d" % (t2, vG4))
    a("v_lshl_add_u32 v%d, v%d, 5, v%d" % (t1, t2, t1))
    a("v_and_b32 v%d, 3, v%d" % (t2, vL15))
    a("v_lshl_add_u32 v%d, v%d, 3, v%d" % (t1, t2, t1))
    a("v_lshrrev_b32 v%d, 1, v%d" % (t0, t0))
    a("v_lshlrev_b32 v%d, 6, v%d" % (t0, t0))
    a("v_add_u32 v%d, v%d, v%d" % (t1, t1, t0))
    a("v_add_u32 v%d, 0x4000, v%d" % (t1, t1))
    vWT0 = [vWT[0], vWT[1]]
    vWT1 = [V(), V()]
    a("v_mov_b32 v%d, v%d" % (vWT0[0], t1))
    a("v_xor_b32 v%d, 64, v%d" % (vWT1[0], t1))
    a("v_add_u32 v%d, 0x%x, v%d" % (vWT0[1], 2 * SLOT2, vWT0[0]))
    a("v_add_u32 v%d, 0x%x, v%d" % (vWT1[1], 2 * SLOT2, vWT1[0]))
    a("s_lshl_b32 s%d, s%d, 19" % (sT0, sRT))
    a("s_lshl_b32 s%d, s%d, 17" % (sT1, sW))
    a("s_add_u32 s%d, s%d, s%d" % (sT0, sT0, sT1))
    a("s_lshl_b32 s%d, s%d, 8" % (sT1, sNB))
    a("s_add_u32 s%d, s%d, s%d" % (sT0, sT0, sT1))
    a("v_lshlrev_b32 v%d, 14, v%d" % (t0, vHf))
    a("v_lshl_add_u32 v%d, v%d, 2, v%d" % (t0, vL31, t0))
    a("v_add_u32 v%d, s%d, v%d" % (vOut, sT0, t0))
    a("s_waitcnt lgkmcnt(0)")
    mk_srd(a, S_WS, P_WS, 256 << 20); mk_srd(a, S_CRE, P_CRE, 512 << 10); mk_srd(a, S_CIM, P_CIM, 512 << 10)
    mk_srd(a, S_WO, P_WO, 512 << 10); mk_srd(a, S_OUT, P_OUT, 8 << 20); mk_srd(a, S_XA, P_AX, 2 << 20)
    a("s_cmp_lg_u32 s%d, 0" % sTY)
    a("s_cbranch_scc1 K2_B")

    def reads_R(stage):
        slot = stage % NS2; st = slot >> 1; loc = (slot & 1) * SLOT2
        def f(j, s_):
            fr = frag[s_]
            return ["ds_read_b128 %s, v%d offset:%d" % (vr(fr, 4), vXf[st][j], loc),
                    "ds_read_b128 %s, v%d offset:%d" % (vr(fr + 4, 4), vWf[st][j], loc),
                    "ds_read_b128 %s, v%d offset:%d" % (vr(fr + 8, 4), vWf[st][j], loc + 4096)]
        return f
    def reads_T(stage):
        slot = stage % NS2; st = slot >> 1; loc = (slot & 1) * SLOT2
        def f(j, s_):
            fr = frag[s_]
            L = ["ds_read_b128 %s, v%d offset:%d" % (vr(fr, 4), vXf[st][j], loc)]
            for tl, vv in enumerate((vWT0, vWT1)):
                for u in range(2):
                    L.append("ds_read_b64_tr_b16 %s, v%d offset:%d" % (vr(fr + 4 + 4 * tl + 2 * u, 2), vv[st], loc + j * 2048 + u * 512))
            return L
        return f
    def mfm(j, s_, first):
        fr = frag[s_]
        return ["v_mfma_f32_32x32x16_bf16 %s, %s, %s, %s" % (vr(acc[tl], 16), vr(fr, 4), vr(fr + 4 + 4 * tl, 4), "0" if first else vr(acc[tl], 16)) for tl in range(2)]

    a("s_lshl_b32 s%d, s%d, 18" % (sT0, sRT))
    a("v_lshl_add_u32 v%d, v%d, 11, v%d" % (t0, rowv, cv))
    a("v_add_u32 v%d, s%d, v%d" % (vXoff, sT0, t0))
    a("s_lshl_b32 s%d, s%d, 16" % (sT0, sNB))
    a("v_lshl_add_u32 v%d, v%d, 10, v%d" % (t0, rowv, cv))
    a("v_add_u32 v%d, s%d, v%d" % (vWoff[0], sT0, t0))
    def dmaA(stage):
        if stage >= 16: return []
        base = (stage % NS2) * SLOT2; tag = ('st', stage); L = []
        for j in range(4):
            L.append([("s_add_u32 m0, s%d, 0x%x" % (sW1024, base + 4096 * j), None),
                      ("s_mov_b32 s%d, 0x%x" % (sOff, WS_H + j * 65536 + stage * 128), None),
                      ("buffer_load_dwordx4 v%d, %s, s%d offen lds" % (vXoff, sr(S_WS, 4), sOff), tag)])
        sd = S_CRE if stage < 8 else S_CIM
        for jj in range(2):
            L.append([("s_add_u32 m0, s%d, 0x%x" % (sW1024, base + 16384 + 4096 * jj), None),
                      ("s_mov_b32 s%d, 0x%x" % (sOff, jj * 32768 + (stage % 8) * 128), None),
                      ("buffer_load_dwordx4 v%d, %s, s%d offen lds" % (vWoff[0], sr(sd, 4), sOff), tag)])
        return L
    for st in range(NS2 - 1):
        for grp in dmaA(st):
            for s, t in grp: a(s, t)
    a("s_lshl_b32 s%d, s%d, 17" % (sT0, sRT))
    a("s_lshl_b32 s%d, s%d, 15" % (sT1, sW))
    a("s_add_u32 s%d, s%d, s%d" % (sT0, sT0, sT1))
    a("s_lshl_b32 s%d, s%d, 7" % (sT1, sNB))
    a("s_add_u32 s%d, s%d, s%d" % (sT0, sT0, sT1))
    a("v_lshlrev_b32 v%d, 12, v%d" % (t0, vHf))
    a("v_lshl_add_u32 v%d, v%d, 1, v%d" % (t0, vL31, t0))
    a("v_add_u32 v%d, s%d, v%d" % (t0, sT0, t0))
    for tl in range(2):
        for i in range(16):
            ro = ((i >> 2) * 8 + (i & 3)) * 1024
            a("s_mov_b32 s%d, 0x%x" % (sOff, ro))
            a("buffer_load_ushort v%d, v%d, %s, s%d offen offset:%d" % (xd + 16 * tl + i, t0, sr(S_XA, 4), sOff, tl * 64), 'x')
    a("v_lshlrev_b32 v%d, 1, v%d" % (t1, vL31))
    a("v_add_u32 v%d, s%d, v%d" % (t1, sT1, t1))
    for tl in range(2):
        a("global_load_ushort v%d, v%d, s[%d:%d] offset:%d" % (dsk + tl, t1, P_DSK, P_DSK + 1, tl * 64), 'x')
    for stage in range(16):
        emit_iter(a, stage, reads_R(stage), mfm, dmaA(stage + NS2 - 1), stage == 0)
    a.nop(12)
    a("s_waitcnt vmcnt(0)")
    for tl in range(2):
        a("v_lshlrev_b32 v%d, 16, v%d" % (dsk + tl, dsk + tl))
    for tl in range(2):
        for i in range(0, 16, 2):
            x0, x1 = xd + 16 * tl + i, xd + 16 * tl + i + 1
            a("v_lshlrev_b32 v%d, 16, v%d" % (x0, x0)); a("v_lshlrev_b32 v%d, 16, v%d" % (x1, x1))
            a("v_mul_f32 v%d, v%d, v%d" % (x0, x0, dsk + tl)); a("v_mul_f32 v%d, v%d, v%d" % (x1, x1, dsk + tl))
            a("v_cvt_pk_bf16_f32 v%d, v%d, v%d" % (x1, x0, x1))
            a("v_lshlrev_b32 v%d, 16, v%d" % (x0, x1)); a("v_and_b32 v%d, 0xffff0000, v%d" % (x1, x1))
            a("v_fma_f32 v%d, 2.0, v%d, v%d" % (x0, acc[tl] + i, x0)); a("v_fma_f32 v%d, 2.0, v%d, v%d" % (x1, acc[tl] + i + 1, x1))
    for tl in range(2):
        for i in range(16):
            a("s_mov_b32 s%d, 0x%x" % (sOff, ((i >> 2) * 8 + (i & 3)) * 4096))
            a("buffer_store_dword v%d, v%d, %s, s%d offen offset:%d" % (xd + 16 * tl + i, vOut, sr(S_OUT, 4), sOff, tl * 128))
    a("s_branch K2_END")

    a.label("K2_B")
    a.vm = []
    a.nop(4)
    a("s_lshl_b32 s%d, s%d, 17" % (sT0, sRT))
    a("v_lshl_add_u32 v%d, v%d, 10, v%d" % (t0, rowv, cv))
    a("v_add_u32 v%d, s%d, v%d" % (vXoff, sT0, t0))
    for jj in range(2):
        a("s_lshl_b32 s%d, s%d, 7" % (sT0, sW))
        a("v_add_u32 v%d, s%d, v%d" % (t0, sT0, vLane))
        if jj: a("v_add_u32 v%d, 64, v%d" % (t0, t0))
        a("v_lshrrev_b32 v%d, 3, v%d" % (t1, t0))
        a("v_and_b32 v%d, 7, v%d" % (t2, t0))
        a("v_bfe_u32 v%d, v%d, 1, 1" % (t3, t1))
        a("v_lshlrev_b32 v%d, 2, v%d" % (t3, t3))
        a("v_xor_b32 v%d, v%d, v%d" % (t2, t2, t3))
        a("v_lshlrev_b32 v%d, 10, v%d" % (t1, t1))
        a("v_lshl_add_u32 v%d, v%d, 4, v%d" % (t1, t2, t1))
        a("s_lshl_b32 s%d, s%d, 7" % (sT0, sNB))
        a("v_add_u32 v%d, s%d, v%d" % (vWoff[jj], sT0, t1))
    sW2048 = 73
    a("s_lshl_b32 s%d, s%d, 11" % (sW2048, sW))
    def dmaB(stage):
        if stage >= 8: return []
        base = (stage % NS2) * SLOT2; tag = ('st', stage); L = []
        for j in range(4):
            L.append([("s_add_u32 m0, s%d, 0x%x" % (sW1024, base + 4096 * j), None),
                      ("s_mov_b32 s%d, 0x%x" % (sOff, WS_O + j * 32768 + stage * 128), None),
                      ("buffer_load_dwordx4 v%d, %s, s%d offen lds" % (vXoff, sr(S_WS, 4), sOff), tag)])
        for jj in range(2):
            L.append([("s_add_u32 m0, s%d, 0x%x" % (sW2048, base + 16384 + 1024 * jj), None),
                      ("s_mov_b32 s%d, 0x%x" % (sOff, stage * 65536), None),
                      ("buffer_load_dwordx4 v%d, %s, s%d offen lds" % (vWoff[jj], sr(S_WO, 4), sOff), tag)])
        return L
    for st in range(NS2 - 1):
        for grp in dmaB(st):
            for s, t in grp: a(s, t)
    for stage in range(8):
        emit_iter(a, stage, reads_T(stage), mfm, dmaB(stage + NS2 - 1), stage == 0)
    a.nop(12)
    for tl in range(2):
        for i in range(0, 16, 2):
            x0, x1 = xd + 16 * tl + i, xd + 16 * tl + i + 1
            a("v_cvt_pk_bf16_f32 v%d, v%d, v%d" % (x1, acc[tl] + i, acc[tl] + i + 1))
            a("v_lshlrev_b32 v%d, 16, v%d" % (x0, x1)); a("v_and_b32 v%d, 0xffff0000, v%d" % (x1, x1))
    for tl in range(2):
        for i in range(16):
            a("s_mov_b32 s%d, 0x%x" % (sOff, ((i >> 2) * 8 + (i & 3)) * 4096 + 2048))
            a("buffer_store_dword v%d, v%d, %s, s%d offen offset:%d" % (xd + 16 * tl + i, vOut, sr(S_OUT, 4), sOff, tl * 128))
    a.label("K2_END")
    a("s_endpgm")
    return V.hi

def kd(name, vg):
    vg = (vg + 7) // 8 * 8
    return """.amdhsa_kernel %s
  .amdhsa_next_free_vgpr %d
  .amdhsa_next_free_sgpr 96
  .amdhsa_accum_offset %d
  .amdhsa_group_segment_fixed_size 0
  .amdhsa_kernarg_size 120
  .amdhsa_user_sgpr_count 2
  .amdhsa_user_sgpr_kernarg_segment_ptr 1
  .amdhsa_system_sgpr_workgroup_id_x 1
.end_amdhsa_kernel
""" % (name, vg, vg)

def main():
    a = Asm()
    hdr = open("cdna_kernels/%s.s.ref" % NAME).read().split("; Override launch")[0]
    a.raw(hdr.rstrip("\n"))
    a.raw("; @launch kernel=%s_k1_kernel grid=(256,1,1) block=(256,1,1) lds=%d" % (NAME, LDS1))
    a.raw("; @launch kernel=%s_k2_kernel grid=(256,1,1) block=(256,1,1) lds=%d" % (NAME, LDS2))
    a.raw('.amdgcn_target "amdgcn-amd-amdhsa--gfx950"\n.text')
    v1 = gen_k1(a)
    v2 = gen_k2(a)
    a.raw('.section .rodata,"a"\n.p2align 6')
    a.raw(kd(NAME + "_k1_kernel", v1))
    a.raw(".p2align 6")
    a.raw(kd(NAME + "_k2_kernel", v2))
    open(sys.argv[1] if len(sys.argv) > 1 else "cdna_kernels/%s.s" % NAME, "w").write(a.text())
main()
```
